```python
import torch

def _softmax(x, axis=-1):
    return torch.softmax(x, dim=axis)
def _gelu(x):
    return torch.nn.functional.gelu(x, approximate="tanh")
def _silu(x):
    return torch.nn.functional.silu(x)
def _sigmoid(x):
    return torch.sigmoid(x)
def _layernorm(x, axis=-1, eps=1e-5):
    m = x.mean(dim=axis, keepdim=True)
    v = x.var(dim=axis, keepdim=True, unbiased=False)
    return (x - m) / torch.sqrt(v + eps)
def _scatter_add(tgt, idx, src, axis=0):
    return tgt.clone().index_add_(axis, idx, src)
def _segment_sum(src, seg, n):
    out = torch.zeros((n,) + src.shape[1:], dtype=src.dtype)
    return out.index_add_(0, seg, src)
def _pad(x, pw):
    flat = tuple(v for pair in reversed(pw) for v in pair)
    return torch.nn.functional.pad(x, flat)

kernel_name = 'gated_mix__linear_attn_block__ssm_conv_s4d__prompt'

def setup_inputs():

    _w = (lambda a: (lambda t: t.to(torch.bfloat16) if t.is_floating_point() else t)(torch.as_tensor(a)))
    def _A_setup():
        B, S, D = 1, 2048, 1024
        return {
            "x": _w((lambda *s: torch.randn(*s, dtype=torch.bfloat16) * 0.05)(B, S, D)),
            "wqkv": _w((lambda *s: torch.randn(*s, dtype=torch.bfloat16) * 0.8)(D, 3 * D)),
            "wo": _w((lambda *s: torch.randn(*s, dtype=torch.bfloat16) * 0.05)(D, D)),
        }
    _A_in = _A_setup()

    def _B_setup():
        Bsz, L, D, N = 1, 2048, 1024, 128
        return {
            "u": _w((lambda *s: torch.randn(*s, dtype=torch.bfloat16) * 0.05)(Bsz, L, D)),
            "log_A_real": _w((lambda *s: torch.randn(*s, dtype=torch.bfloat16) * 3.2)(D, N) * 0.5),
            "A_imag": _w((lambda *s: torch.randn(*s, dtype=torch.bfloat16) * 0.05)(D, N) * 3.14),
            "C_real": _w((lambda *s: torch.randn(*s, dtype=torch.bfloat16) * 0.8)(D, N) / N ** 0.5),
            "C_imag": _w((lambda *s: torch.randn(*s, dtype=torch.bfloat16) * 0.8)(D, N) / N ** 0.5),
            "log_dt": _w((lambda *s: torch.randn(*s, dtype=torch.bfloat16) * 0.05)(D) * 0.5 - 4.0),
            "D_skip": _w((lambda *s: torch.randn(*s, dtype=torch.bfloat16) * 0.1)(D)),
        }
    _B_in = _B_setup()

    return {
        "A_x": _A_in["x"],
        "A_wqkv": _A_in["wqkv"],
        "A_wo": _A_in["wo"],
        "B_u": _B_in["u"],
        "B_log_A_real": _B_in["log_A_real"],
        "B_A_imag": _B_in["A_imag"],
        "B_C_real": _B_in["C_real"],
        "B_C_imag": _B_in["C_imag"],
        "B_log_dt": _B_in["log_dt"],
        "B_D_skip": _B_in["D_skip"],
        "gate_w": _w((lambda *s: torch.randn(*s, dtype=torch.bfloat16) * 0.05)(1024) * 16.0),
    }

def reference(A_x, A_wqkv, A_wo, B_u, B_log_A_real, B_A_imag, B_C_real, B_C_imag, B_log_dt, B_D_skip, gate_w):
    def _A_ref(x, wqkv, wo):
        B, S, D = x.shape
        H = 32; Dh = D // H
        qkv = (lambda x, *d: x.permute(*d))((x @ wqkv).reshape(B, S, 3, H, Dh), 2, 0, 3, 1, 4)
        q, k, v = qkv[0], qkv[1], qkv[2]
        phi = lambda t: torch.where(t > 0, t + 1, torch.exp(t)) + 1e-6
        pq, pk = phi(q), phi(k)
        kv = torch.einsum("bhsd,bhse->bhde", pk, v)
        z = torch.einsum("bhsd->bhd", pk)
        num = torch.einsum("bhqd,bhde->bhqe", pq, kv)
        den = torch.einsum("bhqd,bhd->bhq", pq, z)[..., None] + 1e-6
        o = num / den
        return (lambda x, *d: x.permute(*d))(o, 0, 2, 1, 3).reshape(B, S, D) @ wo

    def _B_ref(u, log_A_real, A_imag, C_real, C_imag, log_dt, D_skip):
        L = u.shape[1]
        dt = torch.exp(log_dt)
        A = -torch.exp(log_A_real) + 1j * A_imag
        C = (C_real + 1j * C_imag) * dt[:, None]
        pos = (lambda x, dt: x.to(dt))(torch.arange(L), log_dt.dtype)
        P = torch.exp((A * dt[:, None])[:, :, None] * pos[None, None, :])
        K = 2.0 * torch.einsum("dn,dnl->dl", C, P).real
        L2 = 2 * L
        u_t = (lambda x, *d: x.permute(*d))(u, 0, 2, 1)
        Kf = (lambda x, *a, **k: torch.fft.rfft(x.float(), *a, **k))(K, L2)
        Uf = (lambda x, *a, **k: torch.fft.rfft(x.float(), *a, **k))(u_t, L2)
        y = (lambda x, *a, **k: torch.fft.irfft(x, *a, **k).to(torch.bfloat16))(Uf * Kf[None, :, :], L2)[:, :, :L]
        y = (lambda x, *d: x.permute(*d))(y, 0, 2, 1)
        return y + u * D_skip[None, None, :]

    x = A_x
    g = _sigmoid((x * gate_w).sum(-1, keepdims=True))
    a = _A_ref(x, A_wqkv, A_wo)
    b = _B_ref(x, B_log_A_real, B_A_imag, B_C_real, B_C_imag, B_log_dt, B_D_skip)
    return g * a + (1 - g) * b
```

```python
import re

class Ins:
    __slots__ = ("text", "tag", "kind", "arg")
    def __init__(self, text, tag=None, kind="ins", arg=None):
        self.text = text; self.tag = tag; self.kind = kind; self.arg = arg

class Prog:
    def __init__(self):
        self.items = []
    def __call__(self, text, tag=None):
        for t in text.strip().split("\n"):
            t = t.strip()
            if not t: continue
            self.items.append(Ins(t, tag))
        return self
    def label(self, name):
        self.items.append(Ins(name + ":", kind="label", arg=name))
    def comment(self, c):
        self.items.append(Ins("; " + c, kind="comment"))
    def wait_vm(self, tag):
        self.items.append(Ins("", kind="waitvm", arg=tag))
    def wait_lgkm(self, tag):
        self.items.append(Ins("", kind="waitlgkm", arg=tag))
    def extend(self, other):
        self.items.extend(other.items if isinstance(other, Prog) else other)

_REG = re.compile(r"^(v|s|a)(\d+)$|^(v|s|a)\[(\d+):(\d+)\]$")
def regs(tok):
    tok = tok.strip()
    tok = re.sub(r"^-", "", tok)
    m = re.match(r"^(abs|neg)\((.*)\)$", tok)
    if m: tok = m.group(2)
    tok = tok.strip("|")
    if tok in ("vcc",): return {("s", 106), ("s", 107)}
    if tok == "vcc_lo": return {("s", 106)}
    if tok == "vcc_hi": return {("s", 107)}
    if tok == "exec": return {("s", 126), ("s", 127)}
    if tok == "m0": return {("s", 124)}
    m = _REG.match(tok)
    if not m: return set()
    if m.group(1): return {(m.group(1), int(m.group(2)))}
    return {(m.group(3), i) for i in range(int(m.group(4)), int(m.group(5)) + 1)}

TRANS = ("v_exp_", "v_log_", "v_rcp_", "v_rsq_", "v_sqrt_", "v_sin_", "v_cos_")

class Info:
    __slots__ = ("mn", "w", "r", "valu", "mfma", "passes", "a", "b", "c", "trans", "dpp", "vmem", "ds", "salu",
                 "lds_dma", "wide_store", "sdata", "permlane", "readlane", "ws", "smem", "opsel", "lanesel")
    pass

def split_ops(s):
    out = []; depth = 0; cur = ""
    for ch in s:
        if ch in "[(": depth += 1
        if ch in "])": depth -= 1
        if ch == "," and depth == 0:
            out.append(cur.strip()); cur = ""
        else: cur += ch
    if cur.strip(): out.append(cur.strip())
    return out

def analyze(text):
    text = text.split(";")[0].strip()
    parts = text.split(None, 1)
    mn = parts[0]; rest = parts[1] if len(parts) > 1 else ""
    ops = split_ops(rest)
    mods = ""
    if ops:
        l = ops[-1].split(None, 1)
        ops[-1] = l[0]; mods = l[1] if len(l) > 1 else ""
    I = Info()
    I.mn = mn; I.w = set(); I.r = set(); I.valu = I.mfma = I.trans = I.dpp = I.vmem = I.ds = I.salu = False
    I.lds_dma = I.wide_store = I.permlane = I.readlane = I.smem = I.opsel = False
    I.passes = 0; I.a = I.b = I.c = set(); I.sdata = set(); I.ws = 1; I.lanesel = set()
    R = [regs(o) for o in ops]
    U = lambda xs: set().union(*xs) if xs else set()
    if mn == "s_nop":
        I.ws = int(ops[0], 0) + 1; I.salu = True
    elif mn.startswith("v_mfma"):
        I.mfma = True; I.valu = False
        I.w = R[0]; I.a, I.b, I.c = R[1], R[2], R[3]; I.r = R[1] | R[2] | R[3]
        if "32x32x16" in mn: I.passes = 8
        elif "16x16x32" in mn: I.passes = 4
        else: raise ValueError("unknown mfma " + mn)
    elif mn.startswith("v_"):
        I.valu = True
        I.trans = mn.startswith(TRANS)
        I.dpp = ("_dpp" in mn) or any(k in mods for k in ("row_", "quad_perm", "wave_"))
        I.opsel = ("_sdwa" in mn and "dst_sel:DWORD" not in mods)
        if mn.startswith("v_cmp"):
            I.w = R[0]; I.r = U(R[1:])
            assert not mn.startswith("v_cmpx")
        elif mn.startswith(("v_readfirstlane", "v_readlane")):
            I.w = R[0]; I.r = U(R[1:]); I.readlane = True
            if len(R) > 2: I.lanesel = R[2]
        elif mn.startswith(("v_add_co", "v_sub_co", "v_addc_co", "v_subb_co", "v_subrev_co")):
            I.w = R[0] | R[1]; I.r = U(R[2:])
        elif mn.startswith("v_permlane"):
            I.w = R[0] | R[1]; I.r = R[0] | R[1]; I.permlane = True
        elif mn.startswith(("v_fmac", "v_dot2c", "v_pk_fmac")):
            I.w = R[0]; I.r = U(R)
        elif mn.startswith("v_nop"):
            pass
        else:
            I.w = R[0]; I.r = U(R[1:])
            if I.dpp: I.r |= R[0]
            if mn.startswith("v_cndmask") and len(ops) == 3: I.r |= regs("vcc")
    elif mn.startswith("ds_"):
        I.ds = True
        if mn.startswith(("ds_read", "ds_bpermute", "ds_permute", "ds_swizzle")) or "_rtn" in mn:
            I.w = R[0]; I.r = U(R[1:])
        else:
            I.r = U(R)
    elif mn.startswith("buffer_") or mn.startswith("global_"):
        I.vmem = True
        lds = bool(re.search(r"\blds\b", mods)) or "_lds_" in mn
        if mn in ("buffer_inv", "buffer_wbl2"):
            pass
        elif lds:
            I.lds_dma = True; I.r = U(R) | regs("m0")
        elif "_load" in mn:
            I.w = R[0]; I.r = U(R[1:])
            if "d16" in mn: I.r |= R[0]
        elif "_store" in mn:
            I.r = U(R)
            d = R[0] if mn.startswith("buffer_") else R[1]
            if "x3" in mn or "x4" in mn:
                I.wide_store = True; I.sdata = d
        elif "_atomic" in mn:
            if "sc0" in mods:
                if mn.startswith("global_"): I.w = R[0]; I.r = U(R[1:])
                else: I.w = R[0]; I.r = U(R)
            else: I.r = U(R)
        else: raise ValueError(mn)
    elif mn.startswith("s_"):
        I.salu = True
        if mn.startswith(("s_load", "s_buffer_load", "s_memtime", "s_memrealtime")):
            I.smem = True; I.w = R[0] if R else set(); I.r = U(R[1:])
        elif mn.startswith(("s_cmp", "s_waitcnt", "s_barrier", "s_branch", "s_cbranch", "s_endpgm", "s_sleep", "s_setprio", "s_bitcmp")):
            I.r = U(R)
        else:
            I.w = R[0] if R else set(); I.r = U(R[1:])
            if "saveexec" in mn: I.w |= regs("exec")
    else:
        raise ValueError("unknown instruction: " + text)
    return I

def isv(rs): return {x for x in rs if x[0] in "va"}
def iss(rs): return {x for x in rs if x[0] == "s"}

def required(p, c):
    n = 0
    if p.valu:
        wv = isv(p.w); ws_ = iss(p.w)
        if c.mfma and wv & c.r: n = max(n, 2)
        if p.trans and c.valu and not c.trans and wv & c.r: n = max(n, 1)
        if p.trans and (c.mfma) and wv & c.r: n = max(n, 2)
        if p.opsel and c.valu and wv & (c.r | c.w): n = max(n, 1)
        if c.valu and c.readlane and wv & c.r: n = max(n, 1)
        if c.valu and (c.permlane or c.dpp) and wv & c.r: n = max(n, 2)
        if ws_:
            if c.valu and ws_ & c.r: n = max(n, 2)
            if c.valu and ws_ & c.lanesel: n = max(n, 4)
            if c.vmem and ws_ & c.r: n = max(n, 5)
            if c.salu and ws_ & c.r: n = max(n, 1)
    if p.mfma:
        P = p.passes
        if c.mfma:
            if p.w & c.c:
                if not (p.w == c.c and c.passes == P): n = max(n, {4: 6, 8: 10}[P])
            if p.w & (c.a | c.b): n = max(n, {4: 8, 8: 12}[P])
            if (p.w & c.w) and not (p.w == c.c and c.passes == P): n = max(n, {4: 6, 8: 10}[P])
        elif c.valu:
            if p.w & (c.r | c.w): n = max(n, {4: 8, 8: 12}[P])
            if p.c & c.w: n = max(n, {4: 3, 8: 7}[P])
        elif c.vmem or c.ds:
            if p.w & (c.r | c.w): n = max(n, {4: 8, 8: 12}[P])
            if p.c & c.w: n = max(n, {4: 8, 8: 12}[P])
    if p.salu and ("s", 124) in p.w and c.lds_dma: n = max(n, 1)
    if p.wide_store and p.sdata & c.w:
        n = max(n, 2)
    return n

def finalize(items, check_branches=True):
    out = []
    vm = []
    lg = []
    for it in items:
        if it.kind == "ins":
            mn = it.text.split()[0]
            if mn.startswith(("buffer_", "global_")) :
                vm.append(it.tag)
            elif mn.startswith("ds_"):
                lg.append(it.tag)
            out.append(it)
        elif it.kind in ("waitvm", "waitlgkm"):
            lst = vm if it.kind == "waitvm" else lg
            idx = max(i for i, t in enumerate(lst) if t == it.arg)
            n = len(lst) - 1 - idx
            mx = 63 if it.kind == "waitvm" else 15
            n = min(n, mx)
            out.append(Ins(("s_waitcnt vmcnt(%d)" if it.kind == "waitvm" else "s_waitcnt lgkmcnt(%d)") % n))
        else:
            out.append(it)
    res = []; hist = []
    def need(hist, c):
        d = 0; n = 0
        for p in reversed(hist):
            if d >= 20: break
            r = required(p, c)
            if r - d > n: n = r - d
            d += p.ws
        return n
    infos = []
    for it in out:
        if it.kind != "ins":
            res.append(it); infos.append(None); continue
        c = analyze(it.text)
        n = need(hist, c)
        while n > 0:
            k = min(n, 16)
            nop = Ins("s_nop %d" % (k - 1)); ci = analyze(nop.text)
            res.append(nop); infos.append(ci); hist.append(ci); n -= k
        res.append(it); infos.append(c); hist.append(c)
        if c.mn in ("s_branch", "s_endpgm"): hist = []
        hist = hist[-24:]
    if check_branches:
        lab = {it.arg: i for i, it in enumerate(res) if it.kind == "label"}
        for i, it in enumerate(res):
            if it.kind == "ins" and it.text.startswith(("s_branch", "s_cbranch")):
                tgt = it.text.split()[1]
                h = [x for x in infos[max(0, i - 40): i + 1] if x is not None][-24:]
                j = lab[tgt]; d = 0
                while j < len(res) and d < 20:
                    c = infos[j]
                    if c is not None:
                        n = need(h, c)
                        if n > 0:
                            raise ValueError(f"hazard across branch '{it.text}' -> '{res[j].text}' needs {n} more wait states")
                        h.append(c); d += c.ws
                        if c.mn in ("s_branch", "s_endpgm"): break
                    j += 1
    return [("" if it.kind == "label" else "  ") + it.text for it in res]

def interleave(main, fill, slots=None):
    n, m = len(main), len(fill)
    out = []; j = 0
    for i, it in enumerate(main):
        out.append(it)
        tgt = (i + 1) * m // n
        while j < tgt:
            out.append(fill[j]); j += 1
    out.extend(fill[j:])
    return out

def kernel_desc(name, vgpr, sgpr=100, accum=None):
    accum = accum or ((vgpr + 3) // 4 * 4)
    return f""".p2align 6
.amdhsa_kernel {name}
  .amdhsa_next_free_vgpr {vgpr}
  .amdhsa_next_free_sgpr {sgpr}
  .amdhsa_accum_offset {accum}
  .amdhsa_group_segment_fixed_size 0
  .amdhsa_kernarg_size 112
  .amdhsa_user_sgpr_count 2
  .amdhsa_user_sgpr_kernarg_segment_ptr 1
  .amdhsa_system_sgpr_workgroup_id_x 1
.end_amdhsa_kernel
"""

def kernel_head(name):
    return f".globl {name}\n.p2align 8\n.type {name},@function\n{name}:\n"
```

```python
import sys
from asmlib import *

NAME = "gated_mix__linear_attn_block__ssm_conv_s4d__prompt_kernel"
WS_O = 0
WS_PART = 4 << 20
WS_Z = 6 << 20
WS_B = 8 << 20
WS_G = 12 << 20
WS_FP = 13 << 20
WS_FO = WS_FP + 4096
WS_FB = WS_FP + 8192
WS_DBG = 16 << 20
WS_SIZE = 32 << 20

STG = 40960
L_U = STG
UC = 4608
L_K = 3 * STG
KREG = 8704
KB_OFF = 4224 + 128
KB_OFF = 4352 + 128
L_SP = L_K + 4 * KREG
L_FLG = L_SP + 4096
LDS_TOTAL = 163840
F_NONCE = L_FLG
F_X1 = L_FLG + 16
F_X2 = L_FLG + 32
F_PCNT = L_FLG + 48
F_PRDY = L_FLG + 52
F_OCNT = L_FLG + 56
F_CONV = L_FLG + 60
F_BCNT = L_FLG + 64
L_ZS = L_FLG + 128
SPIN_MAX = 1 << 22

LOG2E = 0x3fb8aa3b
INV2PI = 0x3e22f983

def srd(p, d, base, nbytes):
    p(f"s_mov_b32 s{d}, s{base}\ns_and_b32 s{d+1}, s{base+1}, 0xffff\ns_mov_b32 s{d+2}, {nbytes}\ns_mov_b32 s{d+3}, 0x20000")

_lab = [0]
def newlab(s):
    _lab[0] += 1
    return f"L_{s}_{_lab[0]}"

def lds_spin(p, addr_v, tmp_v, off, val, sleep=0):
    l = newlab("spin"); o = newlab("spun")
    p("s_mov_b32 s58, 0")
    p.label(l)
    p(f"ds_read_b32 v{tmp_v}, v{addr_v} offset:{off}\ns_waitcnt lgkmcnt(0)\nv_readfirstlane_b32 s59, v{tmp_v}")
    p(f"s_add_u32 s58, s58, 1\ns_cmp_eq_u32 s59, {val}\ns_cbranch_scc1 {o}")
    if sleep: p(f"s_sleep {sleep}")
    p(f"s_cmp_lt_u32 s58, {SPIN_MAX}\ns_cbranch_scc1 {l}")
    p.label(o)

def gen(stamps=False):
    from kaux import aux_stream
    p = Prog()
    p("s_cmp_ge_u32 s2, 256\ns_cbranch_scc1 L_end")
    p("s_load_dwordx16 s[64:79], s[0:1], 0\ns_load_dwordx8 s[80:87], s[0:1], 64\ns_load_dwordx4 s[88:91], s[0:1], 96")
    p("s_memrealtime s[92:93]")
    p("v_lshrrev_b32 v1, 6, v0\nv_and_b32 v0, 63, v0")
    p("v_readfirstlane_b32 s24, v1")
    p("s_and_b32 s25, s2, 7\ns_lshr_b32 s26, s2, 3")
    p("s_and_b32 s27, s25, 1\ns_lshl_b32 s27, s27, 3\ns_and_b32 s3, s26, 7\ns_add_u32 s27, s27, s3")
    p("s_lshr_b32 s28, s25, 1\ns_lshl_b32 s28, s28, 2\ns_lshr_b32 s3, s26, 3\ns_add_u32 s28, s28, s3")
    p("s_lshl_b32 s29, s25, 5\ns_add_u32 s29, s29, s26")
    p("s_lshr_b32 s30, s25, 1\ns_lshl_b32 s30, s30, 2\ns_and_b32 s3, s26, 3\ns_add_u32 s30, s30, s3")
    p("s_and_b32 s31, s25, 1\ns_lshl_b32 s31, s31, 3\ns_lshr_b32 s3, s26, 2\ns_add_u32 s31, s31, s3")
    p("s_waitcnt lgkmcnt(0)")
    srd(p, 4, 64, 2048 * 1024 * 2)
    srd(p, 8, 66, 1024 * 3072 * 2)
    srd(p, 12, 90, WS_SIZE)
    srd(p, 16, 68, 1024 * 1024 * 2)
    srd(p, 20, 86, 2048 * 1024 * 2)
    p("s_cmp_ge_u32 s24, 4\ns_cbranch_scc1 L_aux")
    compute_stream(p, stamps)
    p.label("L_aux")
    aux_stream(p, stamps)
    p.label("L_end")
    p("s_endpgm")
    return p

def stamp(p, n, stamps):
    if stamps: p(f"s_memrealtime s[{40+2*n}:{41+2*n}]")

def dump_stamps(p, n, stamps):
    if not stamps: return
    p("s_waitcnt lgkmcnt(0)")
    p(f"s_lshl_b32 s3, s2, 3\ns_add_u32 s3, s3, s24\ns_lshl_b32 s3, s3, 6\ns_add_u32 s3, s3, {WS_DBG}\nv_mov_b32 v2, 0")
    p("v_mov_b32 v4, s92\nbuffer_store_dword v4, v2, s[12:15], s3 offen")
    for i in range(n):
        p(f"v_mov_b32 v4, s{40+2*i}\nbuffer_store_dword v4, v2, s[12:15], s3 offen offset:{4+4*i}")

def compute_stream(p, stamps):
    ACC = 8; F = [104, 144]; AA = 184; BA = 188
    p("s_and_b32 s32, s24, 1\ns_lshr_b32 s33, s24, 1")
    p("s_lshl_b32 s34, s28, 1\ns_add_u32 s34, s34, s33")
    p("v_and_b32 v2, 15, v0\nv_lshrrev_b32 v3, 4, v0")
    p("v_lshrrev_b32 v4, 1, v2\nv_and_b32 v4, 7, v4")
    p("s_lshl_b32 s3, s32, 13\nv_lshlrev_b32 v5, 7, v2\nv_add_u32 v5, s3, v5")
    for ks in range(2):
        p(f"v_or_b32 v6, {4*ks}, v3\nv_xor_b32 v6, v6, v4\nv_lshl_add_u32 v{AA+ks}, v6, 4, v5\nv_add_u32 v{AA+2+ks}, {2*STG}, v{AA+ks}")
    p("v_bfe_u32 v4, v0, 2, 2\nv_and_b32 v6, 3, v0\nv_lshlrev_b32 v7, 3, v6")
    p("v_bfe_u32 v6, v0, 3, 2\nv_lshlrev_b32 v6, 5, v6")
    p("s_lshl_b32 s3, s33, 6\nv_add_u32 v7, s3, v7")
    p("v_lshl_add_u32 v4, v3, 3, v4\nv_lshl_add_u32 v7, v4, 7, v7")
    p("v_xor_b32 v4, v7, v6\nv_xor_b32 v5, 32, v4")
    p(f"v_add_u32 v{BA}, 16384, v4\nv_add_u32 v{BA+1}, 16384, v5\nv_add_u32 v{BA+2}, {16384+2*STG}, v4\nv_add_u32 v{BA+3}, {16384+2*STG}, v5")
    def reads(n):
        i, ks = divmod(n, 2); st = i % 3; f = F[n & 1]
        w = 2 if st == 2 else 0; so = STG if st == 1 else 0
        def b(sec, ct):
            r0 = f + 16 + 4 * (2 * sec + ct)
            return [f"ds_read_b64_tr_b16 v[{r0+2*t}:{r0+2*t+1}], v{BA+w+ct} offset:{so + sec*8192 + (32*ks+4*t)*128}" for t in range(2)]
        a = lambda mt: f"ds_read_b128 v[{f+4*mt}:{f+4*mt+3}], v{AA+w+ks} offset:{so + mt*2048}"
        return [a(0)] + b(0, 0) + [a(1), a(2), a(3)] + b(0, 1) + b(1, 0) + b(1, 1) + b(2, 0) + b(2, 1)
    def mfmas(n):
        f = F[n & 1]; r = []
        for nt in range(6):
            for mt in range(4):
                acc = ACC + 4 * (4 * nt + mt)
                c = "0" if n == 0 else f"v[{acc}:{acc+3}]"
                A = f"v[{f+4*mt}:{f+4*mt+3}]"; B = f"v[{f+16+4*nt}:{f+16+4*nt+3}]"
                if nt < 2: A, B = B, A
                r.append(f"v_mfma_f32_16x16x32_bf16 v[{acc}:{acc+3}], {A}, {B}, {c}")
        return r
    ln = newlab("nononce")
    p(f"s_cmp_lg_u32 s24, 0\ns_cbranch_scc1 {ln}")
    p("s_or_b32 s3, s92, 1\nv_mov_b32 v216, s3\nv_mov_b32 v217, s93\nv_mov_b32 v218, 0\nv_mov_b32 v219, 0\nv_mov_b32 v212, 0")
    p("s_mov_b64 exec, 1\nglobal_atomic_cmpswap_x2 v[220:221], v212, v[216:219], s[88:89] sc0 sc1\ns_mov_b64 exec, -1")
    p.label(ln)
    p("s_barrier")
    stamp(p, 0, stamps)
    for r in reads(0): p(r)
    for n in range(32):
        p("s_waitcnt lgkmcnt(0)")
        if n % 2 == 1: p("s_barrier")
        rd = reads(n + 1) if n < 31 else []
        for k, m in enumerate(mfmas(n)):
            p(m)
            if k < len(rd): p(rd[k])
        if n == 24:
            ln = newlab("nononce")
            p(f"s_cmp_lg_u32 s24, 0\ns_cbranch_scc1 {ln}")
            p("s_mov_b64 exec, 1\ns_waitcnt vmcnt(0)\nv_cmp_eq_u64 vcc, 0, v[220:221]")
            p(f"v_cndmask_b32 v220, v220, v216, vcc\nv_cndmask_b32 v221, v221, v217, vcc\nv_mov_b32 v212, {F_NONCE}\nds_write_b64 v212, v[220:221]\ns_mov_b64 exec, -1")
            p.label(ln)
    stamp(p, 1, stamps)
    Q0, K0, V0 = ACC, ACC + 32, ACC + 64
    T = 104; PK = 112; PV = 128; ONE = 144; KV = 148; ZT = 164; PQ = 192
    p(f"s_mov_b32 s35, {LOG2E}\ns_mov_b32 s36, 0x358637bd")
    def phi(src, dsts):
        for j in range(4): p(f"v_mul_f32 v{T+j}, s35, v{src+j}")
        for j in range(4): p(f"v_exp_f32_e64 v{T+j}, v{T+j} clamp")
        for j in range(4): p(f"v_max_f32 v{src+j}, s36, v{src+j}")
        for j in range(4): p(f"v_add_f32 v{T+j}, v{T+j}, v{src+j}")
        for j in range(2): p(f"v_cvt_pk_bf16_f32 v{dsts+j}, v{T+2*j}, v{T+2*j+1}")
    for i in range(4): p(f"v_mov_b32 v{ONE+i}, 0x3f803f80")
    for i in range(8): phi(K0 + 4 * i, PK + 2 * i)
    for i in range(16): p(f"v_cvt_pk_bf16_f32 v{PV+i}, v{V0+2*i}, v{V0+2*i+1}")
    for kp in range(2):
        for ce in range(2):
            for cd in range(2):
                d = KV + 8 * ce + 4 * cd
                c = "0" if kp == 0 else f"v[{d}:{d+3}]"
                a = PK + 8 * cd + 4 * kp; b = PV + 8 * ce + 4 * kp
                p(f"v_mfma_f32_16x16x32_bf16 v[{d}:{d+3}], v[{a}:{a+3}], v[{b}:{b+3}], {c}")
        for cd in range(2):
            d = ZT + 4 * cd; c = "0" if kp == 0 else f"v[{d}:{d+3}]"; b = PK + 8 * cd + 4 * kp
            p(f"v_mfma_f32_16x16x32_bf16 v[{d}:{d+3}], v[{ONE}:{ONE+3}], v[{b}:{b+3}], {c}")
    p("v_lshlrev_b32 v2, 4, v0\nv_lshlrev_b32 v5, 2, v0")
    p("s_mul_i32 s37, s24, 3072\ns_xor_b32 s38, s24, 1\ns_mul_i32 s39, s38, 3072")
    p("v_add_u32 v3, s37, v2\nv_add_u32 v4, s39, v2\nv_add_u32 v6, s37, v5\nv_add_u32 v7, s39, v5")
    p(f"s_lshl_b32 s3, s24, 2\ns_add_u32 s3, s3, {L_FLG}\nv_mov_b32 v208, s3")
    p(f"s_lshl_b32 s3, s38, 2\ns_add_u32 s3, s3, {L_FLG}\nv_mov_b32 v209, s3")
    p(f"v_mov_b32 v210, {L_FLG}\nv_mov_b32 v211, 1")
    p("v_and_b32 v212, 16, v0\nv_cmp_ne_u32 vcc, 0, v212")
    p(f"v_cndmask_b32 v{ZT}, v{ZT}, v{ZT+4}, vcc")
    l0 = newlab("wm0"); lj = newlab("wmj")
    p(f"s_cmp_eq_u32 s32, 0\ns_cbranch_scc1 {l0}")
    p(f"ds_write_b128 v3, v[{KV}:{KV+3}]\nds_write_b128 v3, v[{KV+4}:{KV+7}] offset:1024")
    for i in range(8): p(f"v_mov_b32 v{KV+i}, v{KV+8+i}")
    p(f"s_branch {lj}")
    p.label(l0)
    p(f"ds_write_b128 v3, v[{KV+8}:{KV+11}]\nds_write_b128 v3, v[{KV+12}:{KV+15}] offset:1024")
    p.label(lj)
    p(f"ds_write_b32 v6, v{ZT} offset:2048")
    p(f"ds_write_b32 v208, v211 offset:{F_X1-L_FLG}")
    lds_spin(p, 209, 213, F_X1 - L_FLG, 1)
    p(f"ds_read_b128 v[{T}:{T+3}], v4\nds_read_b128 v[{T+4}:{T+7}], v4 offset:1024\nds_read_b32 v213, v7 offset:2048")
    p("s_waitcnt lgkmcnt(0)")
    for i in range(8): p(f"v_add_f32 v{KV+i}, v{KV+i}, v{T+i}")
    p(f"v_add_f32 v{ZT}, v{ZT}, v213")
    p(f"s_lshl_b32 s60, s34, 1\ns_add_u32 s60, s60, s32\ns_lshl_b32 s60, s60, 15\ns_add_u32 s60, s60, {WS_PART}")
    p("s_lshl_b32 s3, s27, 11\ns_add_u32 s61, s60, s3")
    p(f"buffer_store_dwordx4 v[{KV}:{KV+3}], v2, s[12:15], s61 offen sc1\nbuffer_store_dwordx4 v[{KV+4}:{KV+7}], v2, s[12:15], s61 offen offset:1024 sc1")
    p(f"s_lshl_b32 s62, s34, 11\ns_add_u32 s62, s62, {WS_Z}\ns_lshl_b32 s3, s27, 2\ns_add_u32 s63, s62, s3")
    p("v_lshlrev_b32 v212, 6, v0")
    p("s_lshl_b32 s3, s32, 4\ns_lshl_b64 exec, 0xffff, s3")
    p(f"buffer_store_dword v{ZT}, v212, s[12:15], s63 offen sc1")
    p("s_mov_b64 exec, -1")
    for ct in range(2):
        for mt in range(4):
            phi(Q0 + 4 * (4 * ct + mt), PQ + 4 * mt + 2 * ct)
    p("s_waitcnt vmcnt(0)")
    p("s_mov_b64 exec, 1")
    p(f"ds_add_rtn_u32 v213, v210, v211 offset:{F_PCNT-L_FLG}\nds_read_b64 v[214:215], v210 offset:{F_NONCE-L_FLG}\ns_waitcnt lgkmcnt(0)")
    p("v_readfirstlane_b32 s3, v213")
    ls = newlab("nopub")
    p(f"s_lshl_b32 s94, s28, 8\ns_add_u32 s94, s94, {WS_FP}\ns_lshl_b32 s95, s27, 3\ns_add_u32 s95, s95, s94\nv_mov_b32 v212, 0")
    p(f"s_cmp_lg_u32 s3, 3\ns_cbranch_scc1 {ls}")
    p("buffer_store_dwordx2 v[214:215], v212, s[12:15], s95 offen sc1")
    p.label(ls)
    p("s_mov_b64 exec, -1")
    stamp(p, 2, stamps)
    lw = newlab("pw"); ld = newlab("pd"); lp = newlab("pp")
    p(f"v_readfirstlane_b32 s96, v214\nv_readfirstlane_b32 s97, v215")
    p(f"s_cmp_lg_u32 s24, 0\ns_cbranch_scc1 {lw}")
    p("v_and_b32 v212, 15, v0\nv_lshlrev_b32 v212, 3, v212\ns_mov_b32 s58, 0")
    p.label(lp)
    p("buffer_load_dwordx2 v[216:217], v212, s[12:15], s94 offen sc1\ns_waitcnt vmcnt(0)")
    p("v_cmp_ne_u64 vcc, s[96:97], v[216:217]\ns_add_u32 s58, s58, 1")
    lo = newlab("po")
    p(f"s_cmp_ge_u32 s58, {SPIN_MAX}\ns_cbranch_scc1 {lo}\ns_nop 3\ns_cbranch_vccz {lo}\ns_sleep 1\ns_branch {lp}")
    p.label(lo)
    p(f"ds_write_b32 v210, v211 offset:{F_PRDY-L_FLG}")
    p(f"s_branch {ld}")
    p.label(lw)
    lds_spin(p, 210, 213, F_PRDY - L_FLG, 1, sleep=1)
    p.label(ld)
    stamp(p, 3, stamps)
    LD = 8
    p("v_and_b32 v212, 31, v0\nv_lshlrev_b32 v212, 6, v212\nv_lshrrev_b32 v213, 5, v0\nv_lshl_add_u32 v212, v213, 5, v212")
    p("buffer_load_dwordx4 v[216:219], v212, s[12:15], s62 offen sc1", tag="z")
    p("buffer_load_dwordx4 v[220:223], v212, s[12:15], s62 offen offset:16 sc1", tag="z")
    for i in range(32):
        if i % 4 == 0: p(f"s_add_u32 s3, s60, {1024*i}")
        p(f"buffer_load_dwordx4 v[{LD+4*i}:{LD+4*i+3}], v2, s[12:15], s3 offen offset:{1024*(i%4)} sc1", tag=f"pl{i//2}")
    p.wait_vm("z")
    for (a, b) in ((216, 220), (217, 221), (218, 222), (219, 223), (216, 217), (218, 219), (216, 218)):
        p(f"v_add_f32 v{a}, v{a}, v{b}")
    p("v_mov_b32 v217, v216")
    p("v_permlane32_swap_b32 v216, v217")
    p("v_add_f32 v216, v216, v217")
    p(f"s_lshl_b32 s3, s24, 8\ns_add_u32 s3, s3, {L_ZS}\nv_add_u32 v212, s3, v5")
    p("ds_write_b32 v212, v216")
    p("v_and_b32 v213, 48, v0\nv_add_u32 v213, s3, v213")
    p("ds_read_b128 v[216:219], v213\nds_read_b128 v[220:223], v213 offset:64")
    for rb in range(1, 16):
        p.wait_vm(f"pl{rb}")
        for i in range(0, 8, 2):
            p(f"v_pk_add_f32 v[{LD+i}:{LD+i+1}], v[{LD+i}:{LD+i+1}], v[{LD+8*rb+i}:{LD+8*rb+i+1}]")
    KA = 136
    MINE = 148
    for i in range(4): p(f"v_cvt_pk_bf16_f32 v{MINE+i}, v{LD+2*i}, v{LD+2*i+1}")
    p(f"ds_write_b128 v3, v[{MINE}:{MINE+3}]")
    p(f"ds_write_b32 v208, v211 offset:{F_X2-L_FLG}")
    p("s_waitcnt lgkmcnt(0)")
    for i in range(4): p(f"v_cvt_pk_bf16_f32 v{144+i}, v{216+2*i}, v{217+2*i}")
    lds_spin(p, 209, 213, F_X2 - L_FLG, 1)
    p("s_mul_i32 s3, s33, 6144\nv_add_u32 v213, s3, v2")
    p(f"ds_read_b128 v[{KA}:{KA+3}], v213\nds_read_b128 v[{KA+4}:{KA+7}], v213 offset:3072")
    p("s_waitcnt lgkmcnt(0)")
    NUM = 8
    for mt in range(4):
        b = f"v[{PQ+4*mt}:{PQ+4*mt+3}]"; n0 = NUM + 12 * mt
        p(f"v_mfma_f32_16x16x32_bf16 v[{n0+8}:{n0+11}], v[144:147], {b}, 0")
        for ce in range(2):
            p(f"v_mfma_f32_16x16x32_bf16 v[{n0+4*ce}:{n0+4*ce+3}], v[{KA+4*ce}:{KA+4*ce+3}], {b}, 0")
    p("s_lshl_b32 s3, s27, 3\ns_lshl_b32 s61, s32, 2\ns_add_u32 s3, s3, s61\ns_lshl_b32 s3, s3, 15\ns_lshl_b32 s61, s34, 10\ns_add_u32 s61, s61, s3")
    OF = 64
    for mt in range(4):
        n0 = NUM + 12 * mt
        p(f"v_add_f32 v{n0+8}, s36, v{n0+8}\nv_rcp_f32 v{n0+8}, v{n0+8}")
    for mt in range(4):
        n0 = NUM + 12 * mt
        for i in range(8): p(f"v_mul_f32 v{n0+i}, v{n0+i}, v{n0+8}")
        for i in range(4): p(f"v_cvt_pk_bf16_f32 v{OF+4*mt+i}, v{n0+2*i}, v{n0+2*i+1}")
        p(f"s_add_u32 s3, s61, {32768*mt}")
        p(f"buffer_store_dwordx4 v[{OF+4*mt}:{OF+4*mt+3}], v2, s[12:15], s3 offen sc1")
    p("s_waitcnt vmcnt(0)")
    pub_last(p, F_OCNT, 3, "s27", "s28", WS_FO, 210, 211, 212)
    stamp(p, 4, stamps)
    WA = 184
    p("v_bfe_u32 v4, v0, 2, 2\nv_lshrrev_b32 v3, 4, v0\nv_lshl_add_u32 v4, v3, 2, v4")
    p("v_and_b32 v6, 3, v0\nv_lshlrev_b32 v6, 3, v6\nv_lshl_add_u32 v6, v4, 7, v6")
    p("v_bfe_u32 v7, v4, 1, 2")
    for ct in range(4):
        p(f"v_xor_b32 v3, {ct}, v7\nv_lshl_add_u32 v{WA+ct}, v3, 5, v6\nv_add_u32 v{WA+4+ct}, 65536, v{WA+ct}")
    p("s_lshl_b32 s3, s30, 3\ns_lshl_b32 s60, s24, 1\ns_add_u32 s60, s60, s3\ns_lshl_b32 s60, s60, 15\ns_add_u32 s61, s60, 32768")
    p("s_barrier")
    stamp(p, 5, stamps)
    DACC = 8
    OFR = 40
    NR = 12
    WF = [136, 152]
    BG = 192
    def oload(h):
        q = []
        for rt in range(2):
            r = OFR + 8 * (h % NR) + 4 * rt
            hi, lo_ = divmod(h, 4)
            q.append((f"s_add_u32 s3, s{60+rt}, {4096*hi}\nbuffer_load_dwordx4 v[{r}:{r+3}], v2, s[12:15], s3 offen offset:{1024*lo_} sc1", f"o{h}"))
        return q
    def wreads(h):
        f = WF[h & 1]; w = 4 if h >= 16 else 0
        return [f"ds_read_b64_tr_b16 v[{f+4*ct+2*t}:{f+4*ct+2*t+1}], v{WA+w+ct} offset:{(h%16)*4096 + t*2048}" for ct in range(4) for t in range(2)]
    for h in range(NR):
        for t_, tag in oload(h): p(t_, tag=tag)
    p("v_and_b32 v3, 15, v0\nv_lshrrev_b32 v4, 4, v0\nv_lshlrev_b32 v5, 3, v3\nv_lshl_add_u32 v5, v4, 14, v5")
    p(f"s_lshl_b32 s62, s31, 18\ns_lshl_b32 s3, s30, 10\ns_add_u32 s62, s62, s3\ns_lshl_b32 s63, s24, 8\ns_add_u32 s62, s62, s63\ns_add_u32 s62, s62, {WS_B}")
    p(f"s_add_u32 s63, s63, s3\ns_add_u32 s63, s63, {WS_G}\nv_lshlrev_b32 v6, 3, v3")
    for r in wreads(0): p(r)
    for h in range(32):
        p("s_waitcnt lgkmcnt(0)")
        p.wait_vm(f"o{h}")
        rd = wreads(h + 1) if h < 31 else []
        k = 0
        for rt in range(2):
            for ct in range(4):
                acc = DACC + 4 * (4 * rt + ct); c = "0" if h == 0 else f"v[{acc}:{acc+3}]"
                f = WF[h & 1]; o = OFR + 8 * (h % NR) + 4 * rt
                p(f"v_mfma_f32_16x16x32_bf16 v[{acc}:{acc+3}], v[{f+4*ct}:{f+4*ct+3}], v[{o}:{o+3}], {c}")
                if k < len(rd): p(rd[k])
                k += 1
        if h + NR < 32:
            for t_, tag in oload(h + NR): p(t_, tag=tag)
        if h == 20:
            for rt in range(2):
                for ct in range(4):
                    r = BG + 2 * (4 * rt + ct)
                    p(f"s_add_u32 s3, s62, {ct*65536}\nbuffer_load_dwordx2 v[{r}:{r+1}], v5, s[12:15], s3 offen offset:{128*rt} sc1", tag="bg")
                p(f"buffer_load_dwordx2 v[{208+2*rt}:{209+2*rt}], v6, s[12:15], s63 offen offset:{128*rt} sc1", tag="bg")
    stamp(p, 6, stamps)
    p("v_lshlrev_b32 v7, 11, v3\nv_and_b32 v5, 1, v4\nv_lshl_add_u32 v7, v5, 5, v7\nv_lshrrev_b32 v5, 1, v4\nv_lshl_add_u32 v7, v5, 4, v7")
    p("s_lshl_b32 s60, s30, 18\ns_lshl_b32 s3, s24, 16\ns_add_u32 s60, s60, s3\ns_lshl_b32 s3, s31, 7\ns_add_u32 s60, s60, s3\ns_add_u32 s61, s60, 32768")
    p.wait_vm("bg")
    OUT = 40
    for rt in range(2):
        for ct in range(4):
            acc = DACC + 4 * (4 * rt + ct); r = BG + 2 * (4 * rt + ct); t = 72
            p(f"v_lshlrev_b32 v{t}, 16, v{r}\nv_and_b32 v{t+1}, 0xffff0000, v{r}\nv_lshlrev_b32 v{t+2}, 16, v{r+1}\nv_and_b32 v{t+3}, 0xffff0000, v{r+1}")
            for j in range(4): p(f"v_mul_f32 v{t+j}, v{t+j}, v{209+2*rt}")
            for j in range(4): p(f"v_fmac_f32 v{t+j}, v{acc+j}, v{208+2*rt}")
            o = OUT + 8 * rt + 2 * ct
            p(f"v_cvt_pk_bf16_f32 v{o}, v{t}, v{t+1}\nv_cvt_pk_bf16_f32 v{o+1}, v{t+2}, v{t+3}")
        for pr in range(2):
            o = OUT + 8 * rt + 4 * pr
            p(f"v_permlane16_swap_b32 v{o}, v{o+2}\nv_permlane16_swap_b32 v{o+1}, v{o+3}")
            p(f"buffer_store_dwordx4 v[{o}:{o+3}], v7, s[20:23], s{60+rt} offen offset:{64*pr}")
    if stamps:
        p("s_waitcnt vmcnt(0)")
        stamp(p, 7, stamps)
        dump_stamps(p, 8, stamps)
    p("s_endpgm")

def pub_last(p, cnt_off, last, grp_s, mem_s, base, vflg, vone, vtmp):
    ls = newlab("nopub")
    p("s_mov_b64 exec, 1")
    p(f"ds_add_rtn_u32 v{vtmp+1}, v{vflg}, v{vone} offset:{cnt_off-L_FLG}\nds_read_b64 v[{vtmp+2}:{vtmp+3}], v{vflg} offset:{F_NONCE-L_FLG}\ns_waitcnt lgkmcnt(0)")
    p(f"v_readfirstlane_b32 s3, v{vtmp+1}")
    p(f"s_lshl_b32 s94, {grp_s}, 8\ns_add_u32 s94, s94, {base}\ns_lshl_b32 s95, {mem_s}, 3\ns_add_u32 s95, s95, s94\nv_mov_b32 v{vtmp}, 0")
    p(f"s_cmp_lg_u32 s3, {last}\ns_cbranch_scc1 {ls}")
    p(f"buffer_store_dwordx2 v[{vtmp+2}:{vtmp+3}], v{vtmp}, s[12:15], s95 offen sc1")
    p.label(ls)
    p("s_mov_b64 exec, -1")


def emit(path, **kw):
    _lab[0] = 0
    p = gen(**kw)
    hdr = open("gated_mix__linear_attn_block__ssm_conv_s4d__prompt.s.ref").read().split("; Override")[0]
    txt = hdr + f"; @launch grid=(256,1,1) block=(512,1,1) lds={LDS_TOTAL}\n"
    txt += '.amdgcn_target "amdgcn-amd-amdhsa--gfx950"\n.text\n' + kernel_head(NAME)
    txt += "\n".join(finalize(p.items)) + "\n"
    txt += '.section .rodata,"a"\n' + kernel_desc(NAME, 256, 100)
    open(path, "w").write(txt)

def main():
    emit("gated_mix__linear_attn_block__ssm_conv_s4d__prompt.s")
    emit("k_st.s", stamps=True)
```

```python
from asmlib import *
import k as K

def aux_stream(p, stamps):
    STG, L_U, UC, L_K, KREG, KB_OFF, L_SP, L_FLG = K.STG, K.L_U, K.UC, K.L_K, K.KREG, K.KB_OFF, K.L_SP, K.L_FLG
    p("s_sub_u32 s32, s24, 4")
    p("v_lshrrev_b32 v2, 3, v0\nv_and_b32 v3, 7, v0\nv_lshrrev_b32 v4, 4, v0")
    p("s_lshl_b32 s3, s27, 7\ns_lshl_b32 s33, s32, 5\ns_add_u32 s3, s3, s33")
    p("v_add_u32 v5, s3, v2\nv_lshlrev_b32 v5, 11, v5")
    for i in range(4):
        p(f"v_or_b32 v6, {(4*i) & 7}, v4\nv_xor_b32 v6, v6, v3\nv_lshl_add_u32 v{8+i}, v6, 4, v5")
        if i: p(f"v_add_u32 v{8+i}, {16384*i}, v{8+i}")
    p("s_lshl_b32 s3, s32, 4\nv_add_u32 v5, s3, v2\ns_movk_i32 s3, 6144\nv_mul_lo_u32 v5, v5, s3")
    p("v_bfe_u32 v6, v0, 4, 1\nv_lshlrev_b32 v6, 1, v6\nv_xor_b32 v6, v6, v3\nv_lshl_add_u32 v12, v6, 4, v5\nv_xor_b32 v6, 4, v6\nv_lshl_add_u32 v13, v6, 4, v5")
    p("s_lshl_b32 s33, s28, 7\ns_lshl_b32 s34, s32, 12\ns_lshl_b32 s35, s32, 11")
    p("s_and_b32 s36, s26, 7\ns_lshl_b32 s36, s36, 1\ns_lshr_b32 s37, s26, 3\ns_lshl_b32 s37, s37, 2\ns_add_u32 s36, s36, s37")
    def dma(i):
        st = i % 3; G = []
        q = Prog()
        q(f"s_add_u32 s37, s36, {i}\ns_and_b32 s37, s37, 15\ns_lshl_b32 s38, s37, 7\ns_mul_i32 s39, s37, {64*6144}\ns_add_u32 s39, s39, s33")
        for j in range(4):
            q(f"s_add_u32 m0, s34, {st*STG + j*1024}")
            q(f"buffer_load_dwordx4 v{8+j}, s[4:7], s38 offen lds", tag=f"st{i}")
            G.append(q.items); q = Prog()
        for sec in range(3):
            for j in range(2):
                q(f"s_add_u32 m0, s35, {st*STG + 16384 + sec*8192 + j*1024}\ns_add_u32 s60, s39, {j*49152 + sec*2048}")
                q(f"buffer_load_dwordx4 v{12+j}, s[8:11], s60 offen lds", tag=f"st{i}")
                G.append(q.items); q = Prog()
        return G
    for i in range(2):
        for g in dma(i): p.extend(g)
    p("s_lshl_b32 s61, s29, 2\ns_add_u32 s61, s61, s32")
    p("s_lshl_b32 s3, s61, 8\nv_lshl_add_u32 v14, v0, 2, s3")
    PR = 34
    for i in range(4):
        p(f"global_load_dword v{PR+i}, v14, s[{72+2*i}:{73+2*i}]", tag="par")
    p("s_lshl_b32 s3, s61, 1\nv_mov_b32 v15, s3")
    p(f"global_load_ushort v{PR+4}, v15, s[80:81]", tag="par")
    p(f"global_load_ushort v{PR+5}, v15, s[82:83]", tag="par")
    GX = 176
    p("s_lshl_b32 s62, s27, 7\ns_lshl_b32 s3, s28, 3\ns_add_u32 s62, s62, s3\ns_lshl_b32 s3, s32, 1\ns_add_u32 s62, s62, s3")
    p("s_lshl_b32 s63, s62, 11\nv_lshlrev_b32 v15, 5, v0")
    for r in range(2):
        for h in range(2):
            p(f"buffer_load_dwordx4 v[{GX+8*r+4*h}:{GX+8*r+4*h+3}], v15, s[4:7], s63 offen offset:{2048*r+16*h}", tag="gate")
    for h in range(2):
        p(f"global_load_dwordx4 v[{GX+16+4*h}:{GX+16+4*h+3}], v15, s[84:85] offset:{16*h}", tag="gate")
    p(f"v_lshlrev_b32 v6, 2, v0\nv_add_u32 v6, {L_FLG}, v6\nv_mov_b32 v7, 0\nds_write_b32 v6, v7")
    p.wait_vm("st0")
    p("s_waitcnt lgkmcnt(0)\ns_barrier")

    q = Prog()
    q("s_lshl_b32 s3, s32, 6\nv_add_u32 v2, s3, v0")
    q("s_lshl_b32 s3, s29, 3\nv_lshl_add_u32 v14, v2, 14, s3\nv_subrev_u32 v15, 2048, v14")
    UL = []
    u = Prog(); u("buffer_load_dwordx2 v[16:17], v15, s[4:7], 0 offen", tag="u"); UL.append(u.items)
    for i in range(8):
        u = Prog(); u(f"s_movk_i32 s61, {2048*i}\nbuffer_load_dwordx2 v[{18+2*i}:{19+2*i}], v14, s[4:7], s61 offen", tag="u"); UL.append(u.items)
    q("v_sub_u32 v3, 255, v2\nv_lshlrev_b32 v3, 4, v3\nv_lshrrev_b32 v6, 2, v3\nv_and_b32 v6, 64, v6\nv_xor_b32 v3, v3, v6")
    q(f"v_add_u32 v4, {L_U}, v3\nv_xor_b32 v5, 32, v4")

    E1, E2, E4, E8, E16, E256, C, G, H, TM = [40 + 4 * i for i in range(10)]
    t0 = 88
    q.wait_vm("par")
    q(f"s_mov_b32 s40, {K.LOG2E}\ns_mov_b32 s41, {K.INV2PI}" if not stamps else f"s_mov_b32 s56, {K.LOG2E}\ns_mov_b32 s57, {K.INV2PI}")
    SL, SI = ("s40", "s41") if not stamps else ("s56", "s57")
    q(f"v_lshlrev_b32 v{t0}, 16, v{PR+4}\nv_mul_f32 v{t0}, {SL}, v{t0}\nv_exp_f32 v{t0}, v{t0}")
    q(f"v_lshlrev_b32 v{t0+1}, 16, v{PR}\nv_and_b32 v{t0+2}, 0xffff0000, v{PR}")
    q(f"v_mul_f32 v{t0+1}, {SL}, v{t0+1}\nv_mul_f32 v{t0+2}, {SL}, v{t0+2}\nv_exp_f32 v{t0+1}, v{t0+1}\nv_exp_f32 v{t0+2}, v{t0+2}")
    q(f"v_cvt_pk_bf16_f32 v{t0}, v{t0}, v{t0}\nv_cvt_pk_bf16_f32 v{t0+1}, v{t0+1}, v{t0+2}")
    DT = 94; AL = 80; BE = 82
    q(f"v_lshlrev_b32 v{DT}, 16, v{t0}")
    q(f"v_lshlrev_b32 v{AL}, 16, v{t0+1}\nv_and_b32 v{AL+1}, 0xffff0000, v{t0+1}")
    q(f"v_lshlrev_b32 v{BE}, 16, v{PR+1}\nv_and_b32 v{BE+1}, 0xffff0000, v{PR+1}")
    for m in range(2):
        q(f"v_mul_f32 v{AL+m}, v{AL+m}, v{DT}\nv_mul_f32 v{BE+m}, v{BE+m}, v{DT}")
    for m in range(2):
        q(f"v_mul_f32_e64 v{AL+m}, -v{AL+m}, {SL}\nv_mul_f32 v{BE+m}, {SI}, v{BE+m}")
    q(f"v_lshlrev_b32 v{C}, 16, v{PR+2}\nv_lshlrev_b32 v{C+1}, 16, v{PR+3}\nv_and_b32 v{C+2}, 0xffff0000, v{PR+2}\nv_and_b32 v{C+3}, 0xffff0000, v{PR+3}")
    q(f"v_max3_f32 v{t0}, |v{C}|, |v{C+1}|, |v{C+2}|\nv_max_f32_e64 v{t0}, v{t0}, |v{C+3}|")
    for d in ("quad_perm:[1,0,3,2]", "quad_perm:[2,3,0,1]", "row_half_mirror", "row_mirror"):
        q(f"v_max_f32_dpp v{t0}, v{t0}, v{t0} {d} row_mask:0xf bank_mask:0xf")
    q(f"v_readlane_b32 s94, v{t0}, 0\nv_readlane_b32 s95, v{t0}, 16\nv_readlane_b32 s96, v{t0}, 32\nv_readlane_b32 s97, v{t0}, 48")
    q("s_max_u32 s94, s94, s95\ns_max_u32 s96, s96, s97\ns_max_u32 s94, s94, s96\ns_lshr_b32 s94, s94, 23\ns_max_u32 s94, s94, 14\ns_min_u32 s94, s94, 254")
    q("s_sub_u32 s95, 267, s94\ns_lshl_b32 s95, s95, 23\ns_sub_u32 s96, s94, 13\ns_lshl_b32 s96, s96, 23")
    for i in range(4): q(f"v_mul_f32 v{C+i}, s95, v{C+i}")
    FS = 95
    q(f"v_mul_f32 v{FS}, s96, v{DT}\nv_mul_f32 v{FS}, 0x39000000, v{FS}")
    def direct(dst, pos):
        for m in range(2):
            a, b = t0 + 3 * m, t0 + 3 * m + 1
            if pos == 1:
                q(f"v_exp_f32 v{a}, v{AL+m}\nv_fract_f32 v{b}, v{BE+m}")
            else:
                q(f"v_mul_f32 v{a}, {float(pos)}, v{AL+m}" if False else f"v_mul_f32 v{a}, {f32hex(pos)}, v{AL+m}")
                q(f"v_mul_f32 v{b}, {f32hex(pos)}, v{BE+m}\nv_exp_f32 v{a}, v{a}\nv_fract_f32 v{b}, v{b}")
        for m in range(2):
            a, b = t0 + 3 * m, t0 + 3 * m + 1
            q(f"v_cos_f32 v{dst+2*m}, v{b}\nv_sin_f32 v{dst+2*m+1}, v{b}")
        for m in range(2):
            a = t0 + 3 * m
            q(f"v_mul_f32 v{dst+2*m}, v{dst+2*m}, v{a}\nv_mul_f32 v{dst+2*m+1}, v{dst+2*m+1}, v{a}")
    def cmul(dst, x, y, conj=False):
        for m in range(2):
            o = 2 * m
            q(f"v_pk_mul_f32 v[{TM+o}:{TM+o+1}], v[{x+o}:{x+o+1}], v[{y+o}:{y+o+1}] op_sel:[0,0] op_sel_hi:[1,0]")
        for m in range(2):
            o = 2 * m
            ng = "neg_hi:[1,0,0]" if conj else "neg_lo:[1,0,0]"
            q(f"v_pk_fma_f32 v[{dst+o}:{dst+o+1}], v[{x+o}:{x+o+1}], v[{y+o}:{y+o+1}], v[{TM+o}:{TM+o+1}] op_sel:[1,1,0] op_sel_hi:[0,1,1] {ng}")
    TW = 6
    q(f"s_mul_i32 s97, s32, {KREG}\ns_add_u32 s97, s97, {L_K}\nv_lshl_add_u32 v{TW}, v0, 3, s97")
    rowc = [0]
    def row(src, r):
        d = 84 + 2 * (rowc[0] & 1); rowc[0] += 1
        q(f"v_cvt_pk_f16_f32 v{d}, v{src}, v{src+1}\nv_cvt_pk_f16_f32 v{d+1}, v{src+2}, v{src+3}")
        q(f"ds_write_b64 v{TW}, v[{d}:{d+1}] offset:{528*r}")
    BF, AF, KACC = 96, 128, 160
    RA = 7
    def raddr(kind):
        if kind == 0: q(f"v_mov_b32 v{RA}, v2")
        elif kind == 1: q(f"v_lshrrev_b32 v{RA}, 2, v2\nv_and_b32 v{t0}, 3, v2\nv_lshl_add_u32 v{RA}, v{RA}, 1, v{t0}")
        elif kind == 2: q(f"v_lshrrev_b32 v{RA}, 3, v2\nv_mul_u32_u24 v{RA}, 5, v{RA}\nv_bfe_u32 v{t0}, v2, 2, 1\nv_lshl_add_u32 v{RA}, v{t0}, 1, v{RA}\nv_and_b32 v{t0}, 3, v2\nv_add_u32 v{RA}, v{RA}, v{t0}")
        elif kind == 3: q(f"v_lshrrev_b32 v{RA}, 2, v2\nv_mul_u32_u24 v{RA}, 3, v{RA}\nv_and_b32 v{t0}, 3, v2\nv_add_u32 v{RA}, v{RA}, v{t0}")
        q(f"v_mul_u32_u24 v{RA}, 528, v{RA}\nv_add_u32 v{RA}, v{RA}, v3")
    def fragreads(dst, tag):
        for ks in range(8): q(f"ds_read_b128 v[{dst+4*ks}:{dst+4*ks+3}], v{RA} offset:{64*ks}", tag=tag)
    def tile_mfma(t, tag):
        q.wait_lgkm(tag)
        for ks in range(8):
            c = "0" if ks == 0 else f"v[{KACC+4*t}:{KACC+4*t+3}]"
            q(f"v_mfma_f32_16x16x32_f16 v[{KACC+4*t}:{KACC+4*t+3}], v[{AF+4*ks}:{AF+4*ks+3}], v[{BF+4*ks}:{BF+4*ks+3}], {c}")
    q("v_and_b32 v2, 15, v0\nv_and_b32 v3, 48, v0\nv_add_u32 v3, s97, v3")
    direct(E16, 16); direct(E1, 1); direct(E256, 256)
    q(f"v_mov_b32 v{H}, 0x46800000\nv_mov_b32 v{H+1}, 0\nv_mov_b32 v{H+2}, 0x46800000\nv_mov_b32 v{H+3}, 0")
    for j in range(16):
        row(H, j)
        if j < 15: cmul(H, H, E16, conj=True)
    raddr(0); fragreads(BF, "bf")
    row(C, 0); cmul(H, C, E1)
    for f in range(1, 16):
        row(H, f)
        if f < 15: cmul(H, H, E1)
    fragreads(AF, "a0")
    cmul(E2, E1, E1); cmul(G, C, E256); cmul(E4, E2, E2); cmul(E8, E4, E4)
    raddr(1)
    def chain(step, n, r0):
        row(G, r0); cmul(H, G, step)
        for f in range(1, n):
            row(H, r0 + f)
            if f < n - 1: cmul(H, H, step)
    chain(E2, 9, 0)
    tile_mfma(0, "a0")
    fragreads(AF, "a1")
    raddr(2)
    cmul(G, G, E256); chain(E4, 5, 0); cmul(G, G, E256); chain(E4, 5, 5)
    tile_mfma(1, "a1")
    fragreads(AF, "a2")
    raddr(3)
    for g in range(4):
        cmul(G, G, E256); chain(E8, 3, 3 * g)
    tile_mfma(2, "a2")
    fragreads(AF, "a3")
    q.wait_vm("gate")
    GWU = 200
    for i in range(8):
        q(f"v_lshlrev_b32 v{GWU+2*i}, 16, v{GX+16+i}\nv_and_b32 v{GWU+2*i+1}, 0xffff0000, v{GX+16+i}")
    GA = 216
    q(f"v_mov_b32 v{GA}, 0\nv_mov_b32 v{GA+1}, 0\nv_mov_b32 v{GA+2}, 0x3f803f80")
    for i in range(8):
        for r in range(2):
            t = 220 + 2 * r
            q(f"v_lshlrev_b32 v{t}, 16, v{GX+8*r+i}\nv_and_b32 v{t+1}, 0xffff0000, v{GX+8*r+i}")
        for r in range(2):
            t = 220 + 2 * r
            q(f"v_mul_f32 v{t}, v{t}, v{GWU+2*i}\nv_mul_f32 v{t+1}, v{t+1}, v{GWU+2*i+1}")
        for r in range(2):
            t = 220 + 2 * r
            q(f"v_cvt_pk_bf16_f32 v{t}, v{t}, v{t+1}")
        for r in range(2):
            t = 220 + 2 * r
            q(f"v_lshlrev_b32 v{t+1}, 16, v{t}\nv_and_b32 v{t}, 0xffff0000, v{t}")
        for r in range(2):
            t = 220 + 2 * r
            q(f"v_add_f32 v{t}, v{t}, v{t+1}")
        for r in range(2):
            t = 220 + 2 * r
            q(f"v_add_f32 v{GA+r}, v{GA+r}, v{t}")
    for d in ("quad_perm:[1,0,3,2]", "quad_perm:[2,3,0,1]", "row_half_mirror", "row_mirror"):
        for r in range(2):
            q(f"v_add_f32_dpp v{GA+r}, v{GA+r}, v{GA+r} {d} row_mask:0xf bank_mask:0xf")
    q(f"v_permlane16_swap_b32 v{GA}, v{GA+1}")
    q(f"v_add_f32 v{GA}, v{GA}, v{GA+1}")
    q(f"v_mov_b32 v{GA+1}, v{GA}")
    q(f"v_permlane32_swap_b32 v{GA}, v{GA+1}")
    q(f"v_add_f32 v{GA}, v{GA}, v{GA+1}")
    q(f"v_cvt_pk_bf16_f32 v{GA}, v{GA}, v{GA}\nv_lshlrev_b32 v{GA}, 16, v{GA}")
    q(f"v_mul_f32_e64 v{GA}, -v{GA}, {SL}\nv_exp_f32 v{GA}, v{GA}\nv_add_f32 v{GA}, 1.0, v{GA}\nv_rcp_f32 v{GA}, v{GA}")
    q(f"v_cvt_pk_bf16_f32 v{GA}, v{GA}, v{GA}\nv_lshlrev_b32 v{GA}, 16, v{GA}")
    q(f"v_sub_f32 v{GA+1}, 1.0, v{GA}\nv_cvt_pk_bf16_f32 v{GA+1}, v{GA+1}, v{GA+1}\nv_lshlrev_b32 v{GA+1}, 16, v{GA+1}")
    q(f"v_lshrrev_b32 v220, 1, v0\ns_lshl_b32 s3, s62, 3\ns_add_u32 s99, s3, {K.WS_G}")
    q("s_mov_b64 exec, 0x10001")
    q(f"buffer_store_dwordx2 v[{GA}:{GA+1}], v220, s[12:15], s99 offen sc1", tag="gst")
    q("s_mov_b64 exec, -1")
    tile_mfma(3, "a3")
    UA = 224
    KR = 240
    q("v_bfe_u32 v220, v0, 1, 1\nv_bfe_u32 v221, v0, 2, 2\nv_lshrrev_b32 v222, 4, v0")
    q("v_lshlrev_b32 v223, 4, v222\nv_add_u32 v223, 392, v223\nv_lshlrev_b32 v220, 3, v220\nv_sub_u32 v223, v223, v220\nv_lshlrev_b32 v221, 7, v221\nv_sub_u32 v223, v223, v221")
    q(f"v_and_b32 v220, 1, v0\nv_lshlrev_b32 v221, 5, v220")
    q(f"s_mul_i32 s3, s32, {2*UC}\ns_add_u32 s3, s3, {L_U}\nv_mul_u32_u24 v220, {UC}, v220\nv_add_u32 v220, s3, v220")
    q("s_movk_i32 s98, 64")
    for rho in range(8):
        for h in range(2):
            d = UA + 2 * rho + h
            q(f"v_add_u32 v{d}, {64*rho+8*h}, v223\nv_lshrrev_b32 v219, 2, v{d}\nv_and_or_b32 v219, v219, s98, v221\nv_xad_u32 v{d}, v{d}, v219, v220")
    q(f"v_lshrrev_b32 v219, 1, v2\nv_add_u32 v219, v219, v222\nv_lshl_add_u32 v{KR}, v219, 4, s97")
    q(f"v_and_b32 v219, 1, v0\nv_xor_b32 v219, 1, v219\nv_mul_u32_u24 v219, {KB_OFF}, v219\nv_add_u32 v{KR}, v{KR}, v219")
    for i in range(16): q(f"v_mul_f32 v{KACC+i}, v{KACC+i}, v{FS}")
    q(f"v_lshlrev_b32 v{t0}, 16, v{PR+5}\nv_cmp_eq_u32 vcc, 0, v0\nv_cndmask_b32 v{t0}, 0, v{t0}, vcc\nv_add_f32 v{KACC}, v{KACC}, v{t0}")
    q(f"v_and_b32 v219, 31, v0\nv_lshl_add_u32 v219, v219, 2, s97\nv_lshrrev_b32 v220, 5, v0\nv_mul_u32_u24 v220, {KB_OFF}, v220\nv_add_u32 v219, v219, v220\nv_mov_b32 v220, 0\nds_write_b32 v219, v220")
    q("v_lshl_add_u32 v219, v2, 5, s97")
    W = 96
    def pk(d, a, b): q(f"v_cvt_pk_bf16_f32 v{d}, v{a}, v{b}")
    V0_, V1_, V2_ = KACC + 12, KACC + 13, KACC + 14
    ka = [(V0_, V0_), (V0_, V0_), (V0_, V1_), (V1_, V1_), (V1_, V1_), (V1_, V1_), (V2_, V2_), (V2_, V2_)]
    kb = [(V0_, V0_)] + ka[:7]
    for i, (a, b) in enumerate(ka): pk(W + i, a, b)
    for i, (a, b) in enumerate(kb): pk(W + 8 + i, a, b)
    q("v_lshl_add_u32 v220, v222, 9, v219")
    q(f"ds_write_b128 v220, v[{W}:{W+3}] offset:{2048+112}\nds_write_b128 v220, v[{W+4}:{W+7}] offset:{2048+128}")
    q(f"ds_write_b128 v220, v[{W+8}:{W+11}] offset:{2048+KB_OFF+112}\nds_write_b128 v220, v[{W+12}:{W+15}] offset:{2048+KB_OFF+128}")
    V0_, V1_, V2_ = KACC + 8, KACC + 9, KACC + 10
    ka = [(V0_, V0_), (V0_, V1_), (V1_, V1_), (V2_, V2_)]
    kb = [(V0_, V0_)] + ka[:3]
    for i, (a, b) in enumerate(ka): pk(W + 16 + i, a, b)
    for i, (a, b) in enumerate(kb): pk(W + 20 + i, a, b)
    q("v_lshrrev_b32 v220, 1, v222\nv_lshl_add_u32 v220, v220, 9, v219\nv_and_b32 v221, 1, v222\nv_lshl_add_u32 v220, v221, 4, v220")
    q(f"ds_write_b128 v220, v[{W+16}:{W+19}] offset:{1024+112}\nds_write_b128 v220, v[{W+20}:{W+23}] offset:{1024+KB_OFF+112}")
    pk(W + 24, KACC + 4, KACC + 4); pk(W + 25, KACC + 5, KACC + 6)
    pk(W + 26, KACC, KACC + 1); pk(W + 27, KACC + 2, KACC + 3)
    q(f"v_lshl_add_u32 v220, v222, 3, v219\nv_add_u32 v221, {KB_OFF}, v220")
    q(f"ds_write_b64 v220, v[{W+24}:{W+25}] offset:{512+112}\nds_write2_b32 v221, v{W+24}, v{W+25} offset0:157 offset1:158")
    q(f"ds_write_b64 v220, v[{W+26}:{W+27}] offset:112\nds_write2_b32 v221, v{W+26}, v{W+27} offset0:29 offset1:30")
    q("v_lshrrev_b32 v219, 3, v0\ns_lshl_b32 s3, s32, 3\nv_add_u32 v219, s3, v219\nv_lshlrev_b32 v219, 11, v219")
    q("v_bfe_u32 v220, v0, 4, 2\nv_lshlrev_b32 v220, 1, v220\nv_and_b32 v221, 7, v0\nv_xor_b32 v220, v220, v221\nv_lshl_add_u32 v241, v220, 4, v219")
    q("s_lshl_b32 s62, s31, 7\ns_lshl_b32 s63, s32, 10")
    KG = q.items

    NS = 13
    def split_points(items):
        ok = []; masked = False
        for i, it in enumerate(items):
            t = it.text
            ok.append(not masked)
            if t.startswith("s_mov_b64 exec"): masked = not t.endswith("-1")
        return ok
    ok = split_points(KG)
    n = len(KG); pos = 0
    for i in range(16):
        groups = dma(i + 2) if i + 2 < 16 else []
        if 1 <= i <= 9: groups = groups + [UL[i - 1]]
        end = n * (i + 1) // NS if i < NS else n
        end = min(end, n)
        while end < n and not ok[end]: end += 1
        chunk = KG[pos:end]; okc = ok[pos:end]; pos = end
        out = []; gi = 0; m = len(chunk)
        for j, it in enumerate(chunk):
            while gi < len(groups) and okc[j] and j >= gi * m // max(len(groups), 1) * 0.8:
                out.extend(groups[gi]); gi += 1
            out.append(it)
        for g in groups[gi:]: out.extend(g)
        p.extend(out)
        if i == 14:
            p.wait_vm("u")
            p("s_mov_b32 s94, 0x05040100\ns_mov_b32 s95, 0x07060302")
            for ch in range(4):
                sel = "s94" if ch % 2 == 0 else "s95"; o = ch >> 1
                wr = lambda i_: 16 + 2 * i_ + o
                d = 128 + 8 * ch
                for k in range(4): p(f"v_perm_b32 v{d+k}, v{wr(6-2*k)}, v{wr(7-2*k)}, {sel}")
                for k in range(4): p(f"v_perm_b32 v{d+4+k}, v{wr(7-2*k)}, v{wr(8-2*k)}, {sel}")
                p(f"ds_write_b128 v4, v[{d}:{d+3}] offset:{(2*ch)*UC}\nds_write_b128 v5, v[{d+4}:{d+7}] offset:{(2*ch+1)*UC}")
            p(f"v_and_b32 v219, 31, v0\nv_lshlrev_b32 v219, 4, v219\nv_lshrrev_b32 v220, 5, v0\nv_mul_u32_u24 v220, {UC}, v220\nv_add_u32 v219, v219, v220")
            p(f"s_mul_i32 s3, s32, {2*UC}\ns_add_u32 s3, s3, {L_U+4096}\nv_add_u32 v219, s3, v219")
            p("v_mov_b32 v220, 0\nv_mov_b32 v221, 0\nv_mov_b32 v222, 0\nv_mov_b32 v223, 0\nds_write_b128 v219, v[220:223]")
        def wo(h):
            p(f"s_add_u32 m0, s63, {4096*h}\ns_add_u32 s60, s62, {65536*h}")
            p("buffer_load_dwordx4 v241, s[16:19], s60 offen lds", tag="wo")
        if i == 15:
            for h in range(20, 30): wo(h)
        if i + 1 < 16: p.wait_vm(f"st{i+1}")
        p("s_waitcnt lgkmcnt(0)\ns_barrier")
    K.stamp(p, 0, stamps)
    for h in range(3, 10): wo(h)
    CACC = 40; KF = [96, 160]; UF = [128, 192]
    def creads(rho):
        s = rho & 1; r = []
        kf = lambda a: f"ds_read_b128 v[{KF[s]+4*a}:{KF[s]+4*a+3}], v{KR} offset:{512*a+64*rho}"
        uf = lambda b: [f"ds_read_b64 v[{UF[s]+4*b+2*h}:{UF[s]+4*b+2*h+1}], v{UA+2*rho+h} offset:{512*(7-b)}" for h in range(2)]
        for i in range(8):
            r.append(kf(i)); r.extend(uf(i))
        return r
    for r in creads(0): p(r)
    for rho in range(8):
        p("s_waitcnt lgkmcnt(0)")
        rd = creads(rho + 1) if rho < 7 else []
        s = rho & 1; k = 0
        first = set()
        for a in range(8):
            for b in range(8 - a):
                t = a + b; acc = CACC + 4 * t
                c = "0" if (rho == 0 and t not in first) else f"v[{acc}:{acc+3}]"
                first.add(t)
                p(f"v_mfma_f32_16x16x32_bf16 v[{acc}:{acc+3}], v[{UF[s]+4*b}:{UF[s]+4*b+3}], v[{KF[s]+4*a}:{KF[s]+4*a+3}], {c}")
                if k < len(rd): p(rd[k])
                k += 1
    K.stamp(p, 1, stamps)
    p(f"s_cmp_eq_u32 s32, 0\ns_cselect_b32 s97, {L_SP}, s97")
    p("v_and_b32 v2, 1, v0\nv_bfe_u32 v3, v0, 1, 3\nv_lshl_add_u32 v2, v3, 2, v2\nv_lshrrev_b32 v3, 4, v0\nv_lshl_add_u32 v2, v3, 5, v2\nv_lshl_add_u32 v2, v2, 2, s97")
    for t in range(8):
        acc = CACC + 4 * t
        p(f"v_cvt_pk_bf16_f32 v{96+2*t}, v{acc}, v{acc+1}\nv_cvt_pk_bf16_f32 v{97+2*t}, v{acc+2}, v{acc+3}")
        if t % 2 == 0 and t: p("v_add_u32 v2, 1024, v2")
        p(f"ds_write2_b32 v2, v{96+2*t}, v{97+2*t} offset0:{128*(t%2)} offset1:{128*(t%2)+2}")
    p(f"v_mov_b32 v210, {L_FLG}\nv_mov_b32 v211, 1")
    p("s_mov_b64 exec, 1")
    p(f"ds_add_u32 v210, v211 offset:{K.F_CONV-L_FLG}")
    p("s_mov_b64 exec, -1")
    K.lds_spin(p, 210, 212, K.F_CONV - L_FLG, 4)
    p("s_lshl_b32 s3, s32, 10\nv_lshl_add_u32 v2, v0, 2, s3")
    p(f"v_add_u32 v3, {L_K}, v2")
    bases = [L_SP - L_K, KREG, 2 * KREG, 3 * KREG]
    for i in range(4):
        for ch in range(4):
            p(f"ds_read_b32 v{96+4*i+ch}, v3 offset:{bases[ch]+256*i}")
    for h in list(range(10, 20)) + [30, 31]: wo(h)
    p(f"s_lshl_b32 s60, s29, 14\ns_add_u32 s60, s60, {K.WS_B}\nv_lshlrev_b32 v2, 2, v2")
    p("s_waitcnt lgkmcnt(0)")
    for i in range(4):
        c = 96 + 4 * i; d = 112 + 4 * i
        p(f"v_perm_b32 v{d}, v{c+1}, v{c}, s94\nv_perm_b32 v{d+1}, v{c+3}, v{c+2}, s94\nv_perm_b32 v{d+2}, v{c+1}, v{c}, s95\nv_perm_b32 v{d+3}, v{c+3}, v{c+2}, s95")
        p(f"buffer_store_dwordx4 v[{d}:{d+3}], v2, s[12:15], s60 offen offset:{1024*i} sc1")
    p("s_waitcnt vmcnt(0)")
    p("s_lshr_b32 s38, s29, 4\ns_and_b32 s39, s29, 15")
    K.pub_last(p, K.F_BCNT, 3, "s38", "s39", K.WS_FB, 210, 211, 212)
    K.stamp(p, 2, stamps)
    K.lds_spin(p, 210, 216, K.F_OCNT - L_FLG, 4, sleep=2)
    for h in range(0, 3): wo(h)
    K.stamp(p, 3, stamps)
    lsk = K.newlab("nopoll"); lp = K.newlab("poll"); lo = K.newlab("polled")
    p(f"s_cmp_lg_u32 s32, 0\ns_cbranch_scc1 {lsk}")
    p("v_readfirstlane_b32 s96, v214\nv_readfirstlane_b32 s97, v215")
    p(f"s_lshl_b32 s3, s30, 8\ns_add_u32 s3, s3, {K.WS_FO}\ns_lshl_b32 s60, s31, 8\ns_add_u32 s60, s60, {K.WS_FB}")
    p("v_and_b32 v2, 15, v0\nv_lshlrev_b32 v2, 3, v2\nv_mov_b32 v3, s3\nv_mov_b32 v4, s60\nv_and_b32 v5, 16, v0\nv_cmp_ne_u32 vcc, 0, v5\nv_cndmask_b32 v3, v3, v4, vcc\nv_add_u32 v2, v2, v3\ns_mov_b32 s58, 0")
    p.label(lp)
    p("buffer_load_dwordx2 v[216:217], v2, s[12:15], 0 offen sc1\ns_waitcnt vmcnt(0)")
    p("v_cmp_ne_u64 vcc, s[96:97], v[216:217]\ns_add_u32 s58, s58, 1")
    p(f"s_cmp_ge_u32 s58, {K.SPIN_MAX}\ns_cbranch_scc1 {lo}\ns_nop 3\ns_cbranch_vccz {lo}\ns_sleep 1\ns_branch {lp}")
    p.label(lo)
    p.label(lsk)
    p("s_waitcnt vmcnt(0)\ns_barrier")
    K.stamp(p, 4, stamps)
    K.dump_stamps(p, 5, stamps)

import struct
def f32hex(x):
    return "0x%08x" % struct.unpack("<I", struct.pack("<f", float(x)))[0]
```
